```python
import torch

def _softmax(x, axis=-1):
    return torch.softmax(x, dim=axis)
def _gelu(x):
    return torch.nn.functional.gelu(x, approximate="tanh")
def _silu(x):
    return torch.nn.functional.silu(x)
def _sigmoid(x):
    return torch.sigmoid(x)
def _layernorm(x, axis=-1, eps=1e-5):
    m = x.mean(dim=axis, keepdim=True)
    v = x.var(dim=axis, keepdim=True, unbiased=False)
    return (x - m) / torch.sqrt(v + eps)
def _scatter_add(tgt, idx, src, axis=0):
    return tgt.clone().index_add_(axis, idx, src)
def _segment_sum(src, seg, n):
    out = torch.zeros((n,) + src.shape[1:], dtype=src.dtype)
    return out.index_add_(0, seg, src)
def _pad(x, pw):
    flat = tuple(v for pair in reversed(pw) for v in pair)
    return torch.nn.functional.pad(x, flat)

kernel_name = 'gated_mix__ssm_conv_s4__dense_activation_mish__prompt'

def setup_inputs():

    _w = (lambda a: (lambda t: t.to(torch.bfloat16) if t.is_floating_point() else t)(torch.as_tensor(a)))
    def _A_setup():
        B, L, D, N = 1, 2048, 576, 128
        A_re = -(lambda _x: torch.exp(torch.as_tensor(_x)))((lambda *s: torch.randn(*s, dtype=torch.bfloat16) * 6.4)(D, N))
        A_im = torch.pi * (lambda *s: torch.randn(*s, dtype=torch.bfloat16) * 0.05)(D, N)
        B_re = (lambda *s: torch.randn(*s, dtype=torch.bfloat16) * 0.1)(D, N)
        B_im = (lambda *s: torch.randn(*s, dtype=torch.bfloat16) * 0.1)(D, N)
        C_re = (lambda *s: torch.randn(*s, dtype=torch.bfloat16) * 0.1)(D, N)
        C_im = (lambda *s: torch.randn(*s, dtype=torch.bfloat16) * 0.1)(D, N)
        log_dt = (lambda *s: torch.randn(*s, dtype=torch.bfloat16) * 0.05)(D) * 0.5 - 4.0
        Dskip = (lambda *s: torch.randn(*s, dtype=torch.bfloat16) * 0.05)(D)
        return {
            "u": _w((lambda *s: torch.randn(*s, dtype=torch.bfloat16) * 0.05)(B, L, D)),
            "A_re": _w(A_re),
            "A_im": _w(A_im),
            "B_re": _w(B_re),
            "B_im": _w(B_im),
            "C_re": _w(C_re),
            "C_im": _w(C_im),
            "log_dt": _w(log_dt),
            "Dskip": _w(Dskip),
        }
    _A_in = _A_setup()

    def _B_setup():
        B, S, D, F = 1, 2048, 576, 4608
        return {
            "x": _w((lambda *s: torch.randn(*s, dtype=torch.bfloat16) * 0.05)(B, S, D)),
            "w1": _w((lambda *s: torch.randn(*s, dtype=torch.bfloat16) * 6.4)(D, F) * (D ** -0.5)),
            "b1": _w((lambda *s: torch.randn(*s, dtype=torch.bfloat16) * 0.05)(F)),
            "w2": _w((lambda *s: torch.randn(*s, dtype=torch.bfloat16) * 0.05)(F, D) * (F ** -0.5)),
        }
    _B_in = _B_setup()

    return {
        "A_u": _A_in["u"],
        "A_A_re": _A_in["A_re"],
        "A_A_im": _A_in["A_im"],
        "A_B_re": _A_in["B_re"],
        "A_B_im": _A_in["B_im"],
        "A_C_re": _A_in["C_re"],
        "A_C_im": _A_in["C_im"],
        "A_log_dt": _A_in["log_dt"],
        "A_Dskip": _A_in["Dskip"],
        "B_x": _B_in["x"],
        "B_w1": _B_in["w1"],
        "B_b1": _B_in["b1"],
        "B_w2": _B_in["w2"],
        "gate_w": _w((lambda *s: torch.randn(*s, dtype=torch.bfloat16) * 0.05)(576) * 16.0),
    }

def reference(A_u, A_A_re, A_A_im, A_B_re, A_B_im, A_C_re, A_C_im, A_log_dt, A_Dskip, B_x, B_w1, B_b1, B_w2, gate_w):
    def _A_ref(u, A_re, A_im, B_re, B_im, C_re, C_im, log_dt, Dskip):
        Bsz, L, D = u.shape
        dt = torch.exp(log_dt)[:, None]
        A = A_re + 1j * A_im
        Bc = B_re + 1j * B_im
        Cc = C_re + 1j * C_im
        logdA = dt * A
        dB = dt * Bc
        l = (lambda x, dt: x.to(dt))(torch.arange(L), A_re.dtype)
        P = torch.exp(logdA[:, :, None] * l[None, None, :])
        K = torch.einsum("dn,dnl,dn->dl", Cc, P, dB).real
        L2 = 2 * L
        Kp = _pad(K, ((0, 0), (0, L)))
        up = (lambda x, *d: x.permute(*d))(u, 0, 2, 1)
        up = _pad(up, ((0, 0), (0, 0), (0, L)))
        Kf = (lambda x, axes=(-2,-1): torch.fft.rfft2(x.float(), dim=axes))(Kp[:, None, :], axes=(-2, -1))
        Uf = (lambda x, axes=(-2,-1): torch.fft.rfft2(x.float(), dim=axes))(up[:, :, None, :], axes=(-2, -1))
        Yf = Uf * Kf[None, :, :, :]
        y = (lambda x, s, axes=(-2,-1): torch.fft.irfft2(x, s=s, dim=axes).to(torch.bfloat16))(Yf, (1, L2), axes=(-2, -1))[:, :, 0, :L]
        y = (lambda x, *d: x.permute(*d))(y, 0, 2, 1) + u * Dskip[None, None, :]
        return y

    def _B_ref(x, w1, b1, w2):
        h = torch.einsum("bsd,df->bsf", x, w1) + b1
        sp = torch.log1p(torch.exp(-torch.abs(h))) + torch.where(h > 0, h, torch.zeros_like(h))
        act = h * torch.tanh(sp)
        return torch.einsum("bsf,fd->bsd", act, w2)

    x = A_u
    g = _sigmoid((x * gate_w).sum(-1, keepdims=True))
    a = _A_ref(x, A_A_re, A_A_im, A_B_re, A_B_im, A_C_re, A_C_im, A_log_dt, A_Dskip)
    b = _B_ref(x, B_w1, B_b1, B_w2)
    return g * a + (1 - g) * b
```

```python
import sys, struct

NAME = "gated_mix__ssm_conv_s4__dense_activation_mish__prompt"
L, D, F, NST = 2048, 576, 4608, 128
S = 6
FC = F // S
WS_P = 0
SLAB = L * D * 2
WS_A = 0x1000000
WS_G = 0x1300000
WS_DBG = 0x1400000
WS_BYTES = 268435456

OPT = dict(stamps=False, store_flags="", a_flags="", prefetch=True, prio=False)


def fbits(x):
    return struct.unpack("<I", struct.pack("<f", x))[0]


LOG2E = fbits(1.4426950408889634)
INV2PI = fbits(0.15915494309189535)


class E:
    def __init__(self):
        self.lines = []

    def __call__(self, s):
        for ln in s.split("\n"):
            self.lines.append(ln if ln.endswith(":") else "    " + ln.strip())

    def label(self, s):
        self.lines.append(s + ":")

    def c(self, s):
        self.lines.append("    ; " + s)

    def text(self):
        return "\n".join(self.lines) + "\n"


def vr(a, n=1):
    return f"v{a}" if n == 1 else f"v[{a}:{a+n-1}]"


def srd(e, d, ptr, nbytes):
    e(f"s_mov_b32 s{d}, s{ptr}")
    e(f"s_and_b32 s{d+1}, s{ptr+1}, 0xffff")
    e(f"s_mov_b32 s{d+2}, {nbytes}")
    e(f"s_mov_b32 s{d+3}, 0x20000")


def stamp(e, idx, tmp=82):
    if not OPT["stamps"]:
        return
    e(f"s_memrealtime s[{tmp+2*idx}:{tmp+2*idx+1}]")


def stamp_flush(e, n, wavereg, tmp=82):
    if not OPT["stamps"]:
        return
    e("s_waitcnt lgkmcnt(0) vmcnt(0)")
    e(f"s_load_dwordx2 s[98:99], s[0:1], 128")
    e(f"s_lshl_b32 s100, s2, 3")
    e(f"s_add_u32 s100, s100, s{wavereg}")
    e(f"s_lshl_b32 s100, s100, 6")
    e(f"s_add_u32 s100, s100, {WS_DBG}")
    e("v_mov_b32 v2, s100")
    e("s_waitcnt lgkmcnt(0)")
    for i in range(n):
        e(f"v_mov_b32 v3, s{tmp+2*i}")
        e(f"global_store_dword v2, v3, s[98:99] offset:{4*i}")
    e("s_waitcnt vmcnt(0)")


sX, sW, sW2, sB, sP = 4, 8, 12, 16, 20
sWAVE, sM, sS, sT, sQ = 24, 25, 26, 27, 28
sLO, sHI, sOFF, sINC, sR, sBOFF, sSTO, sW2OFF, sTMP = 29, 30, 31, 32, 33, 34, 35, 36, 37
vXH = 0
vBIAS, vONE = 144, 148
vXB = 152
vRLO, vRHI = 156, 157
vACC1, vACC0 = 176, 192
vWF = 208
vTMP = 232
vDA, vDB, vD2A, vD2B, vDHA, vDHB = 240, 241, 242, 243, 244, 245
vR2, vRH, vHW, vHR, vST, vBO = 246, 247, 248, 249, 250, 251
vLANE = 252
HBASE = 65536


def mfma(e, d, a, b, c=None):
    cs = "0" if c is None else vr(c, 16)
    e(f"v_mfma_f32_32x32x16_bf16 {vr(d,16)}, {vr(a,4)}, {vr(b,4)}, {cs}")


def wslot(k):
    return vWF + 4 * (k % 6)


def mish_ops(acc, pair):
    a, b = acc + 2 * pair, acc + 2 * pair + 1
    ta, tb = vTMP, vTMP + 1
    return [
        f"v_mul_f32 v{ta}, {LOG2E:#x}, v{a}",
        f"v_mul_f32 v{tb}, {LOG2E:#x}, v{b}",
        f"v_exp_f32 v{ta}, v{ta}",
        f"v_exp_f32 v{tb}, v{tb}",
        f"v_add_f32 v{ta}, 1.0, v{ta}",
        f"v_add_f32 v{tb}, 1.0, v{tb}",
        f"v_fma_f32 v{ta}, v{ta}, v{ta}, 1.0",
        f"v_fma_f32 v{tb}, v{tb}, v{tb}, 1.0",
        f"v_rcp_f32 v{ta}, v{ta}",
        f"v_rcp_f32 v{tb}, v{tb}",
        f"v_fma_f32 v{ta}, v{ta}, -2.0, 1.0",
        f"v_fma_f32 v{tb}, v{tb}, -2.0, 1.0",
        f"v_mul_f32 v{a}, v{a}, v{ta}",
        f"v_mul_f32 v{b}, v{b}, v{tb}",
        f"v_cvt_pk_bf16_f32 v{acc+pair}, v{a}, v{b}",
    ]


def vm_plan():
    q = []
    waits = {}

    def need(key, tags):
        idx = max(i for i, t in enumerate(q) if t in tags)
        for t in tags:
            assert t in q, (key, t)
        n = len(q) - 1 - idx
        waits[key] = min(waits.get(key, 99), n)

    q.append("B0")
    for i in range(4):
        q.extend([f"W{i}", f"W{i}"])
        q.append(f"X{i}")
    for i in range(4, 9):
        q.append(f"X{i}")
    need("pre0", ["W0", "X0", "B0"])
    need("pre1", ["W1", "X1"])
    for R in range(6):
        for j in range(9):
            g = 9 * R + j
            q.extend([f"W{g+4}"] * 2)
            if j == 1:
                q.append(f"B{R+1}")
            key = ("p1", 0 if R == 0 else (1 if R & 1 else 2), j)
            if R == 5 and j == 8:
                key = ("p1x", 5, 8)
            tags = [f"W{g+2}"]
            if R == 0 and j + 2 <= 8:
                tags.append(f"X{j+2}")
            if j == 8:
                tags.append(f"B{R+1}")
            need(key, tags)
    for R in range(4):
        for j in range(12):
            g = 54 + 12 * R + j
            q.extend([f"W{g+4}"] * 2)
            if R >= 1 and j in (1, 5):
                q.append(f"S{R}_{j}")
            need(("p2", 0 if R == 0 else 1, j), [f"W{g+2}"])
    qa = list(q)
    for act in (0, 1):
        q = list(qa)
        for J in range(6):
            if J < 2:
                q.extend([f"W{106+J}"] * 2)
            if J in (0, 1):
                q.append(f"S4_{J}")
            if J < 4:
                need(("ph", J), [f"W{102+J+2}"])
    return waits


def gen_mlp(e):
    W = vm_plan()
    e.label("L_mlp")
    e.c("item = 24*x + (j-8); split = item>>5; m = item&31")
    e("s_and_b32 s38, s2, 7")
    e("s_lshr_b32 s39, s2, 3")
    e("s_mul_i32 s38, s38, 24")
    e("s_add_u32 s38, s38, s39")
    e("s_sub_u32 s38, s38, 8")
    e(f"s_lshr_b32 s{sS}, s38, 5")
    e(f"s_and_b32 s{sM}, s38, 31")
    e(f"s_and_b32 s{sT}, s{sWAVE}, 1")
    e(f"s_lshr_b32 s{sQ}, s{sWAVE}, 1")
    l = vLANE
    t0, t1, t2, t3 = vTMP, vTMP + 1, vTMP + 2, vTMP + 3
    e.c("W1 dma offsets")
    e(f"v_lshrrev_b32 v{t0}, 4, v{l}")
    e(f"v_lshlrev_b32 v{t1}, 2, v{t0}")
    e(f"v_and_b32 v{t2}, 15, v{l}")
    e(f"v_xor_b32 v{t1}, v{t1}, v{t2}")
    e(f"v_lshlrev_b32 v{t1}, 4, v{t1}")
    e(f"s_lshl_b32 s38, s{sWAVE}, 3")
    e(f"v_add_u32 v{t0}, s38, v{t0}")
    e(f"v_mul_u32_u24 v{t2}, 9216, v{t0}")
    e(f"v_add_u32 v{vDA}, v{t2}, v{t1}")
    e(f"v_add_u32 v{vDB}, {4*9216-1024}, v{vDA}")
    e(f"v_mul_u32_u24 v{t2}, 1152, v{t0}")
    e(f"v_add_u32 v{vD2A}, v{t2}, v{t1}")
    e(f"v_add_u32 v{vD2B}, {4*1152-1024}, v{vD2A}")
    e.c("X dma offset -> vXB (temporary)")
    e(f"v_lshrrev_b32 v{t0}, 3, v{l}")
    e(f"v_add_u32 v{t0}, s38, v{t0}")
    e(f"v_bfe_u32 v{t1}, v{t0}, 1, 3")
    e(f"v_and_b32 v{t2}, 7, v{l}")
    e(f"v_xor_b32 v{t1}, v{t1}, v{t2}")
    e(f"v_lshlrev_b32 v{t1}, 4, v{t1}")
    e(f"v_mul_u32_u24 v{t3}, 1152, v{t0}")
    e(f"v_add_u32 v{vXB}, v{t3}, v{t1}")
    e.c("halfround W2 dma offsets: row 8w+(l>>3), 128B rows, 64B-block swizzle by (row>>1)&1")
    e(f"v_bfe_u32 v{t1}, v{t0}, 1, 1")
    e(f"v_lshlrev_b32 v{t1}, 2, v{t1}")
    e(f"v_xor_b32 v{t1}, v{t1}, v{t2}")
    e(f"v_lshlrev_b32 v{t1}, 4, v{t1}")
    e(f"v_add_u32 v{vDHA}, v{t3}, v{t1}")
    e(f"v_add_u32 v{vDHB}, {64*1152-1024}, v{vDHA}")
    e.c("bias offset: lanes<32 -> (l)*2, lanes>=32 -> out of range")
    e(f"v_lshlrev_b32 v{vBO}, 1, v{l}")
    e(f"v_mov_b32 v{t0}, 0x7ff00000")
    e(f"v_cmp_gt_u32 vcc, 32, v{l}")
    e(f"s_mul_i32 s38, s{sM}, {64*1152}")
    e(f"s_mul_i32 s{sOFF}, s{sS}, {FC*2}")
    e(f"v_cndmask_b32 v{vBO}, v{t0}, v{vBO}, vcc")
    e(f"s_lshl_b32 s{sBOFF}, s{sQ}, 6")
    e(f"s_add_u32 s{sBOFF}, s{sBOFF}, s{sOFF}")
    e(f"s_lshl_b32 s{sLO}, s{sWAVE}, 11")
    e(f"s_add_u32 s{sHI}, s{sLO}, 32768")
    e(f"s_lshl_b32 s39, s{sWAVE}, 10")
    e(f"s_add_u32 s39, s39, {HBASE}")
    e(f"s_mov_b32 s{sINC}, {64*9216}")
    e(f"s_mul_i32 s{sW2OFF}, s{sS}, {FC*1152}")
    e("s_waitcnt lgkmcnt(0)")
    srd(e, sX, 40, L * D * 2)
    srd(e, sW, 44, D * F * 2)
    srd(e, sB, 46, F * 2)
    srd(e, sW2, 48, D * F * 2)
    srd(e, sP, 50, S * SLAB)
    e(f"buffer_load_ushort v{vBIAS}, v{vBO}, s[{sB}:{sB+3}], s{sBOFF} offen")

    def dma_w(slotbase, slotoff, a=vDA, b=vDB):
        if slotoff:
            e(f"s_add_u32 m0, s{slotbase}, {slotoff}")
        else:
            e(f"s_mov_b32 m0, s{slotbase}")
        e("s_nop 0")
        e(f"buffer_load_dwordx4 v{a}, s[{sW}:{sW+3}], s{sOFF} offen lds")
        e(f"buffer_load_dwordx4 v{b}, s[{sW}:{sW+3}], s{sOFF} offen offset:1024 lds")

    def dma_x(kb):
        e(f"s_add_u32 m0, s39, {kb*(8192-128)}")
        e("s_nop 0")
        e(f"buffer_load_dwordx4 v{vXB}, s[{sX}:{sX+3}], s38 offen offset:{kb*128} lds")

    for i in range(4):
        dma_w(sHI if i & 2 else sLO, (i & 1) * 16384)
        e(f"s_add_u32 s{sOFF}, s{sOFF}, s{sINC}")
        dma_x(i)
    for i in range(4, 9):
        dma_x(i)
    stamp(e, 1)
    e.c("remaining address registers")
    e(f"v_lshrrev_b32 v{t0}, 5, v{l}")
    e(f"v_bfe_u32 v{t1}, v{l}, 2, 2")
    e(f"v_xor_b32 v{t2}, s{sQ}, v{t1}")
    e(f"v_lshlrev_b32 v{t2}, 6, v{t2}")
    e(f"v_bfe_u32 v{t3}, v{l}, 4, 1")
    e(f"v_lshl_add_u32 v{t2}, v{t3}, 5, v{t2}")
    e(f"v_and_b32 v{t3}, 3, v{l}")
    e(f"v_lshl_add_u32 v{t2}, v{t3}, 3, v{t2}")
    e(f"v_lshl_add_u32 v{t2}, v{t1}, 8, v{t2}")
    e(f"v_lshl_add_u32 v{vRLO}, v{t0}, 11, v{t2}")
    e(f"v_add_u32 v{vRHI}, 32768, v{vRLO}")
    e(f"v_lshl_add_u32 v{vR2}, v{t0}, 10, v{t2}")
    e(f"v_lshrrev_b32 v{t2}, 1, v{t1}")
    e(f"s_and_b32 s40, s{sQ}, 1")
    e(f"v_xor_b32 v{t2}, s40, v{t2}")
    e(f"v_lshlrev_b32 v{t2}, 6, v{t2}")
    e(f"v_lshl_add_u32 v{t2}, v{t3}, 3, v{t2}")
    e(f"v_bfe_u32 v{t3}, v{l}, 4, 1")
    e(f"v_lshl_add_u32 v{t2}, v{t3}, 5, v{t2}")
    e(f"v_lshl_add_u32 v{t2}, v{t1}, 7, v{t2}")
    e(f"v_lshl_add_u32 v{vRH}, v{t0}, 9, v{t2}")
    e(f"s_mul_i32 s40, s{sT}, 49152")
    e(f"s_add_u32 s40, s40, {HBASE}")
    e(f"v_lshlrev_b32 v{vST}, 4, v{l}")
    e(f"v_add_u32 v{vHR}, s40, v{vST}")
    e(f"s_lshl_b32 s41, s{sQ}, 11")
    e(f"v_add_u32 v{vHW}, s41, v{vHR}")
    e(f"s_lshl_b32 s40, s{sS}, 5")
    e(f"s_add_u32 s40, s40, s{sM}")
    e(f"s_lshl_b32 s40, s40, 1")
    e(f"s_add_u32 s40, s40, s{sT}")
    e(f"s_mul_i32 s40, s40, 36864")
    e(f"s_add_u32 s{sSTO}, s40, s41")
    e(f"v_and_b32 v{t1}, 31, v{l}")
    e(f"s_lshl_b32 s40, s{sT}, 5")
    e(f"v_add_u32 v{t1}, s40, v{t1}")
    e(f"v_bfe_u32 v{t2}, v{t1}, 1, 3")
    e(f"v_lshlrev_b32 v{t1}, 7, v{t1}")
    e(f"v_add_u32 v{t1}, {HBASE}, v{t1}")
    for u in range(4):
        e(f"v_add_u32 v{t3}, {2*u}, v{t0}")
        e(f"v_xor_b32 v{t3}, v{t3}, v{t2}")
        e(f"v_lshl_add_u32 v{vXB+u}, v{t3}, 4, v{t1}")
    for k in (1, 2, 3):
        e(f"v_mov_b32 v{vBIAS+k}, 0")
        e(f"v_mov_b32 v{vONE+k}, 0")
    e(f"v_mov_b32 v{t1}, 0x3f80")
    e(f"v_cmp_gt_u32 vcc, 32, v{l}")
    e(f"s_mov_b32 s{sR}, 0")
    e("s_nop 0")
    e(f"v_cndmask_b32 v{vONE}, 0, v{t1}, vcc")

    def rd_w(k, base, off, jstride):
        r = wslot(k)
        return [f"ds_read_b64_tr_b16 {vr(r,2)}, v{base} offset:{off}",
                f"ds_read_b64_tr_b16 {vr(r+2,2)}, v{base} offset:{off+jstride}"]

    def rd_p1(k, slot0, ks):
        return rd_w(k, vRHI if slot0 & 2 else vRLO, (slot0 & 1) * 16384 + ks * 4096, 1024)

    def rd_p2(k, slot, ks):
        return rd_w(k, vR2, slot * 16384 + ks * 4096, 2048)

    def rd_ph(k, J, p, ks):
        return rd_w(k, vRH, (J & 3) * 16384 + p * 1024 + ks * 4096, 2048)

    def rd_x(kb):
        out = []
        for u in range(4):
            off = kb * 8192 if kb < 8 else 7 * 8192
            out.append(f"ds_read_b128 {vr(vXH+4*(4*kb+u),4)}, v{vXB+u} offset:{off}")
        return out

    def rd_h(j2):
        return [f"ds_read_b128 {vr(vXH+4*(4*j2+u),4)}, v{vHR} offset:{(4*j2+u)*1024}" for u in range(4)]

    e(f"s_waitcnt vmcnt({W['pre0']})")
    e("s_barrier")
    stamp(e, 2)
    for ks in range(4):
        for s_ in rd_p1(ks, 0, ks):
            e(s_)
    for s_ in rd_x(0):
        e(s_)
    e(f"s_waitcnt vmcnt({W['pre1']}) lgkmcnt(0)")

    def stage(k0, acc, breg, reads, dma, valu, extra, wait, first=None, pre=None):
        e("s_barrier")
        if pre:
            pre()
        valu = list(valu)
        nv = len(valu)
        cuts = [0, nv * 1 // 8, nv * 3 // 8, nv * 6 // 8, nv] if nv else [0] * 5
        if first == "bias":
            mfma(e, acc, vBIAS, vONE)
        mfma(e, acc, wslot(k0), breg(0), None if first == "zero" else acc)
        for s_ in reads[0] + reads[1] + reads[2]:
            e(s_)
        for s_ in valu[cuts[0]:cuts[1]]:
            e(s_)
        mfma(e, acc, wslot(k0 + 1), breg(1), acc)
        for s_ in reads[3]:
            e(s_)
        if dma:
            dma()
        for s_ in valu[cuts[1]:cuts[2]]:
            e(s_)
        mfma(e, acc, wslot(k0 + 2), breg(2), acc)
        for s_ in extra[0]:
            e(s_)
        for s_ in valu[cuts[2]:cuts[3]]:
            e(s_)
        mfma(e, acc, wslot(k0 + 3), breg(3), acc)
        for s_ in valu[cuts[3]:cuts[4]]:
            e(s_)
        for s_ in extra[1]:
            e(s_)
        if wait is not None:
            e(wait)

    def p1_round(kind):
        R0 = kind
        acc = vACC1 if kind == 1 else vACC0
        pacc = vACC0 if kind == 1 else vACC1
        for j in range(9):
            if kind == 1 and j == 8:
                e(f"s_cmp_eq_u32 s{sR}, 5")
                e("s_cbranch_scc1 L_p1exit")
            p1_stage(kind, R0, j, acc, pacc, False)

    def p1_stage(kind, R0, j, acc, pacc, exiting):
        g0 = 9 * R0 + j
        k0 = 4 * j
        if exiting:
            reads = [rd_p2(k0 + 4 + u, (54 + 0) % 4, u) for u in range(4)]
        else:
            reads = [rd_p1(k0 + 4 + u, (g0 + 1) % 4, u) for u in range(4)]

        def dma():
            if j == 5:
                if kind == 1:
                    e(f"s_cmp_eq_u32 s{sR}, 5")
                    e("s_cbranch_scc0 L_nosw1")
                    e(f"s_mov_b32 s{sW}, s{sW2}")
                    e(f"s_mov_b32 s{sW+1}, s{sW2+1}")
                    e(f"s_mov_b32 s{sINC}, {64*1152}")
                    e(f"s_add_u32 s{sOFF}, s{sW2OFF}, {9*64*9216-256}")
                    e(f"v_mov_b32 v{vDA}, v{vD2A}")
                    e(f"v_mov_b32 v{vDB}, v{vD2B}")
                    e.label("L_nosw1")
                e(f"s_sub_u32 s{sOFF}, s{sOFF}, {9*64*9216-256}")
            sl = g0 % 4
            dma_w(sHI if sl & 2 else sLO, (sl & 1) * 16384)
            e(f"s_add_u32 s{sOFF}, s{sOFF}, s{sINC}")
            if j == 1:
                e(f"s_add_u32 s{sBOFF}, s{sBOFF}, 256")
                e(f"buffer_load_ushort v{vBIAS}, v{vBO}, s[{sB}:{sB+3}], s{sBOFF} offen")

        valu, ex0, ex1 = [], [], []
        if kind == 0:
            if j < 8:
                if j == 7:
                    ex0 = [f"v_add_u32 v{vXB+u}, 8192, v{vXB+u}" for u in range(4)]
                ex0 = ex0 + rd_x(j + 1)
        else:
            if j >= 1:
                valu = mish_ops(pacc, j - 1)
            if j == 4:
                ex1 = [f"ds_write_b128 v{vHW}, {vr(pacc,4)}"]
            if j == 8:
                ex1 = [f"ds_write_b128 v{vHW}, {vr(pacc+4,4)} offset:1024", f"v_add_u32 v{vHW}, 8192, v{vHW}"]
        if exiting:
            ex0 = rd_h(0)
        key = ("p1x", 5, 8) if exiting else ("p1", kind, j)
        stage(k0, acc, lambda u: vXH + 4 * (k0 + u), reads, dma, valu, [ex0, ex1],
              f"s_waitcnt vmcnt({W[key]}) lgkmcnt(0)", first="bias" if j == 0 else None)

    p1_round(0)
    stamp(e, 3)
    e(f"s_mov_b32 s{sR}, 1")
    e.label("L_p1loop")
    p1_round(1)
    p1_round(2)
    e(f"s_add_u32 s{sR}, s{sR}, 2")
    e(f"v_swap_b32 v{vRLO}, v{vRHI}")
    e(f"s_mov_b32 s{sTMP}, s{sLO}")
    e(f"s_mov_b32 s{sLO}, s{sHI}")
    e(f"s_mov_b32 s{sHI}, s{sTMP}")
    e("s_branch L_p1loop")
    e.label("L_p1exit")
    p1_stage(1, 1, 8, vACC1, vACC0, True)
    stamp(e, 4)

    def pack_acc():
        for c in range(8):
            e(f"v_cvt_pk_bf16_f32 v{vTMP+c}, v{vACC0+2*c}, v{vACC0+2*c+1}")

    def swaps():
        return [f"v_permlane32_swap_b32 v{vTMP+0}, v{vTMP+2}", f"v_permlane32_swap_b32 v{vTMP+1}, v{vTMP+3}",
                f"v_permlane32_swap_b32 v{vTMP+4}, v{vTMP+6}", f"v_permlane32_swap_b32 v{vTMP+5}, v{vTMP+7}"]

    def store(jj):
        fl = OPT["store_flags"]
        return f"buffer_store_dwordx4 {vr(vTMP+4*jj,4)}, v{vST}, s[{sP}:{sP+3}], s{sSTO} offen offset:{1024*jj} {fl}"

    def p2_round(kind):
        for j in range(12):
            k0 = 4 * j
            sl = (54 + j) % 4
            if j < 11:
                reads = [rd_p2(k0 + 4 + u, (54 + j + 1) % 4, u) for u in range(4)]
            else:
                reads = [rd_p2(k0 + 4 + u, (54 + 12) % 4, u) for u in range(4)]
            if kind == 1 and j == 11:
                e(f"s_cmp_eq_u32 s{sR}, 3")
                e("s_cbranch_scc1 L_p2exit")

            def dma(j=j, sl=sl):
                if j == 8:
                    if kind == 1:
                        e(f"s_cmp_eq_u32 s{sR}, 3")
                        e("s_cbranch_scc0 L_nosw2")
                        e(f"s_mov_b32 s{sINC}, {128*1152}")
                        e(f"s_add_u32 s{sOFF}, s{sW2OFF}, {1024+12*64*1152-256}")
                        e(f"v_mov_b32 v{vDA}, v{vDHA}")
                        e(f"v_mov_b32 v{vDB}, v{vDHB}")
                        e.label("L_nosw2")
                    e(f"s_sub_u32 s{sOFF}, s{sOFF}, {12*64*1152-256}")
                dma_w(sHI if sl & 2 else sLO, (sl & 1) * 16384)
                e(f"s_add_u32 s{sOFF}, s{sOFF}, s{sINC}")
                if kind == 1 and j == 1:
                    e(store(0))
                if kind == 1 and j == 5:
                    e(store(1))
                    e(f"s_add_u32 s{sSTO}, s{sSTO}, 8192")

            valu, ex0, ex1, pre = [], [], [], None
            if kind == 0:
                if 1 <= j <= 8:
                    valu = mish_ops(vACC1, j - 1)
                if j == 4:
                    ex1 = [f"ds_write_b128 v{vHW}, {vr(vACC1,4)}"]
                if j == 8:
                    ex1 = [f"ds_write_b128 v{vHW}, {vr(vACC1+4,4)} offset:1024"]
                if j < 11:
                    ex0 = rd_h(j + 1)
            else:
                if j == 0:
                    def pre():
                        e("s_nop 7")
                        e("s_nop 1")
                        pack_acc()
                    valu = ["s_nop 0"] + swaps()
            stage(k0, vACC0, lambda u, k0=k0: vXH + 4 * (k0 + u), reads, dma, valu, [ex0, ex1],
                  f"s_waitcnt vmcnt({W[('p2', kind, j)]}) lgkmcnt(0)", first="zero" if j == 0 else None, pre=pre)

    p2_round(0)
    stamp(e, 5)
    e(f"s_mov_b32 s{sR}, 1")
    e.label("L_p2loop")
    p2_round(1)
    e(f"s_add_u32 s{sR}, s{sR}, 1")
    e("s_branch L_p2loop")
    e.label("L_p2exit")
    j = 11
    k0 = 44
    sl = (54 + j) % 4
    ps = lambda J: (102 + J) % 4

    def dma_last():
        dma_w(sHI if sl & 2 else sLO, (sl & 1) * 16384)
        e(f"s_add_u32 s{sOFF}, s{sOFF}, s{sINC}")
    reads = [rd_ph(k0 + 4 + u, ps(0), 0, u) for u in range(4)]
    stage(k0, vACC0, lambda u: vXH + 4 * (k0 + u), reads, dma_last, [], [[], []],
          f"s_waitcnt vmcnt({W[('p2', 1, 11)]}) lgkmcnt(0)")
    stamp(e, 6)
    e(f"s_cmp_ge_u32 s{sWAVE}, 4")
    e("s_cbranch_scc1 L_halfidle")

    def dma_h(J):
        e(f"s_add_u32 m0, s{sLO}, {HBASE + J*16384}")
        e("s_nop 0")
        e(f"buffer_load_dwordx4 v{vDA}, s[{sW}:{sW+3}], s{sOFF} offen lds")
        e(f"buffer_load_dwordx4 v{vDB}, s[{sW}:{sW+3}], s{sOFF} offen offset:1024 lds")
        e(f"s_add_u32 s{sOFF}, s{sOFF}, s{sINC}")

    for J in range(6):
        for p in range(2):
            hs = 2 * J + p
            k0 = 4 * hs
            nxt = hs + 1
            if nxt < 12:
                Jn, pn = nxt >> 1, nxt & 1
                pre_add = []
                if Jn == 4 and pn == 0:
                    pre_add = [f"v_add_u32 v{vRH}, {HBASE}, v{vRH}"]
                slotn = ps(Jn) if Jn < 4 else Jn - 4
                reads = [rd_ph(k0 + 4 + u, slotn, pn, u) for u in range(4)]
                reads[0] = pre_add + reads[0]
            else:
                reads = [[], [], [], []]
            if p == 0:
                if J < 5:
                    e("s_barrier")
                if J == 0:
                    e("s_nop 7")
                    e("s_nop 1")
                    pack_acc()
            mfma(e, vACC0, wslot(k0), vXH + 4 * k0, None if hs == 0 else vACC0)
            for s_ in reads[0] + reads[1] + reads[2]:
                e(s_)
            if hs == 0:
                for s_ in swaps():
                    e(s_)
            mfma(e, vACC0, wslot(k0 + 1), vXH + 4 * (k0 + 1), vACC0)
            for s_ in reads[3]:
                e(s_)
            if p == 0 and J < 2:
                dma_h(J)
                e(store(J))
                if J == 1:
                    e(f"s_add_u32 s{sSTO}, s{sSTO}, 8192")
            mfma(e, vACC0, wslot(k0 + 2), vXH + 4 * (k0 + 2), vACC0)
            mfma(e, vACC0, wslot(k0 + 3), vXH + 4 * (k0 + 3), vACC0)
            if p == 1 and J < 4:
                e(f"s_waitcnt vmcnt({W[('ph', J)]}) lgkmcnt(0)")
            else:
                e("s_waitcnt lgkmcnt(0)")
    e("s_nop 7")
    e("s_nop 3")
    pack_acc()
    e("s_nop 1")
    for s_ in swaps():
        e(s_)
    e(store(0))
    e(store(1))
    e("s_branch L_mlpdone")
    e.label("L_halfidle")
    for J in range(5):
        e("s_barrier")
        if J == 0:
            e("s_nop 7")
            e("s_nop 1")
            pack_acc()
            e("s_nop 1")
            for s_ in swaps():
                e(s_)
        if J < 2:
            dma_h(J)
            e(store(J))
        if J < 4:
            e(f"s_waitcnt vmcnt({W[('ph', J)]})")
    e.label("L_mlpdone")
    stamp(e, 7)
    stamp_flush(e, 8, sWAVE)
    e("s_endpgm")


RSZ = 20480
UOFF, KGX, KGY = 0, 5200, 5200 + 22 * 272
EOFF, OOFF = 5200, 5200 + 4164


def gen_ssm(e):
    sU, sA, sG = 4, 8, 12
    sW1p, sW2p = 16, 20
    sIDX, sCH, sIT, sBASE = 25, 26, 27, 28
    pAre, pAim, pBre, pBim, pCre, pCim, pLdt, pDsk, pGw = 56, 58, 60, 62, 64, 66, 68, 70, 72
    l = vLANE
    e.label("L_ssm")
    e("s_load_dwordx4 s[56:59], s[0:1], 8")
    e("s_load_dwordx4 s[60:63], s[0:1], 24")
    e("s_load_dwordx4 s[64:67], s[0:1], 40")
    e("s_load_dwordx4 s[68:71], s[0:1], 56")
    e("s_load_dwordx2 s[72:73], s[0:1], 104")
    e("s_and_b32 s38, s2, 7")
    e("s_lshr_b32 s39, s2, 3")
    e(f"s_lshl_b32 s{sIDX}, s38, 3")
    e(f"s_add_u32 s{sIDX}, s{sIDX}, s39")
    e(f"s_lshl_b32 s{sCH}, s{sIDX}, 3")
    e(f"s_add_u32 s{sCH}, s{sCH}, s{sWAVE}")
    e(f"s_mul_i32 s{sBASE}, s{sWAVE}, {RSZ}")
    e(f"s_mov_b32 s{sIT}, 0")
    e("s_waitcnt lgkmcnt(0)")
    srd(e, sU, 40, L * D * 2)
    srd(e, sW1p, 44, D * F * 2)
    srd(e, sW2p, 48, D * F * 2)
    e("s_add_u32 s52, s50, %d" % WS_A)
    e("s_addc_u32 s53, s51, 0")
    srd(e, sA, 52, L * D * 2)
    e("s_add_u32 s52, s50, %d" % WS_G)
    e("s_addc_u32 s53, s51, 0")
    srd(e, sG, 52, L * 4)

    vPF = 200

    def prefetch(which):
        if not OPT["prefetch"]:
            return
        e("s_lshl_b32 s74, s39, 3")
        e(f"s_add_u32 s74, s74, s{sWAVE}")
        e("s_mul_i32 s75, s38, 24")
        e("s_add_u32 s76, s75, 23")
        e("s_lshr_b32 s75, s75, 5")
        e("s_lshr_b32 s76, s76, 5")
        if which == 1:
            for half in range(2):
                e(f"v_add_u32 v{vPF}, {64*half}, v{l}")
                e(f"v_mul_u32_u24 v{vPF+1}, 7282, v{vPF}")
                e(f"v_lshrrev_b32 v{vPF+1}, 16, v{vPF+1}")
                e(f"v_mul_u32_u24 v{vPF+2}, 9, v{vPF+1}")
                e(f"v_sub_u32 v{vPF+2}, v{vPF}, v{vPF+2}")
                e("s_mul_i32 s77, s74, 9")
                e(f"v_add_u32 v{vPF+2}, s77, v{vPF+2}")
                e(f"v_mul_u32_u24 v{vPF+2}, 9216, v{vPF+2}")
                e(f"v_lshl_add_u32 v{vPF+3+half}, v{vPF+1}, 7, v{vPF+2}")
            e(f"v_mov_b32 v{vPF}, 0x7ff00000")
            e(f"v_cmp_gt_u32 vcc, 44, v{l}")
            e(f"s_mul_i32 s75, s75, {FC*2}")
            e(f"s_mul_i32 s76, s76, {FC*2}")
            e(f"v_cndmask_b32 v{vPF+4}, v{vPF}, v{vPF+4}, vcc")
            R_ = sW1p
        else:
            e("s_mul_i32 s77, s74, 108")
            e(f"v_add_u32 v{vPF+3}, s77, v{l}")
            e(f"v_lshlrev_b32 v{vPF+3}, 7, v{vPF+3}")
            e(f"v_add_u32 v{vPF+4}, {64*128}, v{vPF+3}")
            e(f"v_mov_b32 v{vPF}, 0x7ff00000")
            e(f"v_cmp_gt_u32 vcc, 44, v{l}")
            e(f"s_mul_i32 s75, s75, {FC*1152}")
            e(f"s_mul_i32 s76, s76, {FC*1152}")
            e(f"v_cndmask_b32 v{vPF+4}, v{vPF}, v{vPF+4}, vcc")
            R_ = sW2p
        e(f"buffer_load_dword v{vPF+5}, v{vPF+3}, s[{R_}:{R_+3}], s75 offen")
        e(f"buffer_load_dword v{vPF+5}, v{vPF+3}, s[{R_}:{R_+3}], s76 offen")
        e(f"buffer_load_dword v{vPF+5}, v{vPF+4}, s[{R_}:{R_+3}], s75 offen")
        e(f"buffer_load_dword v{vPF+5}, v{vPF+4}, s[{R_}:{R_+3}], s76 offen")

    vP = 10

    def load_params():
        e(f"s_lshl_b32 s78, s{sCH}, 8")
        e(f"v_lshl_add_u32 v86, v{l}, 2, s78")
        e(f"s_lshl_b32 s78, s{sCH}, 1")
        e(f"v_mov_b32 v87, s78")
        for i, p in enumerate((pAre, pAim, pBre, pBim, pCre, pCim)):
            e(f"global_load_dword v{vP+i}, v86, s[{p}:{p+1}]")
        e(f"global_load_ushort v{vP+6}, v87, s[{pLdt}:{pLdt+1}]")
        e(f"global_load_ushort v{vP+7}, v87, s[{pDsk}:{pDsk+1}]")

    load_params()
    vU = 20
    e(f"s_lshl_b32 s78, s{sWAVE}, 8")
    e(f"v_add_u32 v4, s78, v{l}")
    e(f"v_mul_u32_u24 v5, 1152, v4")
    e(f"s_lshl_b32 s78, s{sIDX}, 4")
    for j in range(4):
        e(f"buffer_load_dwordx4 {vr(vU+4*j,4)}, v5, s[{sU}:{sU+3}], s78 offen")
        if j < 3:
            e(f"s_add_u32 s78, s78, {64*1152}")
    prefetch(1)
    vGX, vGW = 40, 60
    e(f"s_lshl_b32 s78, s{sIDX}, 5")
    e(f"s_lshl_b32 s79, s{sWAVE}, 2")
    e(f"s_add_u32 s78, s78, s79")
    e(f"v_lshrrev_b32 v6, 4, v{l}")
    e(f"v_add_u32 v6, s78, v6")
    e(f"v_and_b32 v7, 15, v{l}")
    e(f"v_lshlrev_b32 v7, 4, v7")
    e(f"v_mul_u32_u24 v8, 1152, v6")
    e(f"v_add_u32 v8, v8, v7")
    for j in range(4):
        e(f"buffer_load_dwordx4 {vr(vGX+4*j,4)}, v8, s[{sU}:{sU+3}], 0 offen offset:{256*j}")
        e(f"global_load_dwordx4 {vr(vGW+4*j,4)}, v7, s[{pGw}:{pGw+1}] offset:{256*j}")
    e(f"v_mov_b32 v9, 0x7ff00000")
    e(f"v_cmp_gt_u32 vcc, 128, v7")
    e(f"v_min_u32 v7, 112, v7")
    e("s_nop 0")
    e(f"v_cndmask_b32 v8, v9, v8, vcc")
    e(f"buffer_load_dwordx4 {vr(vGX+16,4)}, v8, s[{sU}:{sU+3}], 0 offen offset:1024")
    e(f"global_load_dwordx4 {vr(vGW+16,4)}, v7, s[{pGw}:{pGw+1}] offset:1024")
    npf = 4 if OPT["prefetch"] else 0
    e(f"v_lshrrev_b32 v80, 5, v4")
    e(f"v_mul_u32_u24 v80, 80, v80")
    e(f"v_and_b32 v81, 31, v4")
    e(f"v_xor_b32 v81, 7, v81")
    e(f"v_lshl_add_u32 v80, v81, 1, v80")
    e(f"v_add_u32 v80, 80, v80")
    e(f"v_add_u32 v81, {4*RSZ}, v80")
    e(f"v_lshl_add_u32 v82, v{l}, 2, s{sBASE}")
    e(f"v_mov_b32 v83, 0")
    e(f"v_cmp_gt_u32 vcc, 20, v{l}")
    e("s_and_saveexec_b64 s[80:81], vcc")
    e(f"ds_write_b32 v82, v83")
    e("s_mov_b64 exec, s[80:81]")
    e(f"s_waitcnt vmcnt({npf+10})")
    for j in range(4):
        for ch in range(8):
            op = "ds_write_b16_d16_hi" if ch & 1 else "ds_write_b16"
            base = 81 if ch >= 4 else 80
            e(f"{op} v{base}, v{vU+4*j+(ch>>1)} offset:{(ch&3)*RSZ + j*160}")
    e("s_waitcnt vmcnt(0)")
    e(f"v_mov_b32 v84, 0")
    e(f"v_mov_b32 v85, 0")
    for i in range(20):
        e(f"v_dot2_f32_bf16 v{84+(i&1)}, v{vGX+i}, v{vGW+i}, v{84+(i&1)}")
    e("s_nop 2")
    e("v_add_f32 v84, v84, v85")
    for sh in (1, 2, 4, 8):
        e("s_nop 1")
        e(f"v_add_f32_dpp v84, v84, v84 row_shr:{sh} row_mask:0xf bank_mask:0xf")
    e(f"v_mul_f32 v84, {fbits(-1.4426950408889634):#x}, v84")
    e("v_exp_f32 v84, v84")
    e("s_nop 0")
    e("v_add_f32 v84, 1.0, v84")
    e("v_rcp_f32 v84, v84")
    e(f"v_and_b32 v85, 15, v{l}")
    e(f"v_lshlrev_b32 v6, 2, v6")
    e(f"v_cmp_eq_u32 vcc, 15, v85")
    e("s_nop 1")
    e(f"v_cndmask_b32 v6, v9, v6, vcc")
    e(f"buffer_store_dword v84, v6, s[{sG}:{sG+3}], 0 offen {OPT['a_flags']}")
    e("s_waitcnt lgkmcnt(0)")
    e("s_barrier")
    stamp(e, 1)

    e.label("L_chan")
    vDT, vDS = 18, 19
    e.c("dt = bf16(exp(log_dt))")
    e(f"v_lshlrev_b32 v{vDT}, 16, v{vP+6}")
    e(f"v_lshlrev_b32 v{vDS}, 16, v{vP+7}")
    e(f"v_mul_f32 v{vDT}, {LOG2E:#x}, v{vDT}")
    e(f"v_exp_f32 v{vDT}, v{vDT}")
    vKW, vKA, vKB = 20, 21, 22
    e(f"v_lshl_add_u32 v{vKW}, v{l}, 2, s{sBASE}")
    e(f"v_cvt_pk_bf16_f32 v{vDT}, v{vDT}, v{vDT}")
    e(f"v_and_b32 v2, 31, v{l}")
    e(f"v_lshrrev_b32 v3, 5, v{l}")
    e(f"v_and_b32 v{vDT}, 0xffff0000, v{vDT}")
    e(f"v_mul_u32_u24 v{vKA}, 272, v2")
    e(f"v_lshl_add_u32 v{vKA}, v3, 4, v{vKA}")
    e(f"v_add_u32 v{vKA}, s{sBASE}, v{vKA}")
    vKACC = 96
    vFR = 112

    def cmul(d, a, b):
        t = 24
        cmul.k ^= 1
        t = 24 + 2 * cmul.k
        e(f"v_pk_mul_f32 {vr(t,2)}, {vr(a,2)}, {vr(b,2)} op_sel:[1,1] op_sel_hi:[1,0]")
        e(f"v_pk_fma_f32 {vr(d,2)}, {vr(a,2)}, {vr(b,2)}, {vr(t,2)} op_sel_hi:[0,1,1] neg_lo:[0,0,1]")
    cmul.k = 0

    def put(row, src, isx):
        put.k = (put.k + 1) & 3
        t = 28 + put.k
        neg = "-" if isx else ""
        e(f"v_cvt_pk_bf16_f32 v{t}, v{src}, {neg}v{src+1}")
        e(f"ds_write_b32 v{vKW}, v{t} offset:{(KGX if isx else KGY) + row*272}")
    put.k = 0

    for p in range(2):
        e.c(f"kgen pass {p}")
        a0 = 32
        for i in range(6):
            if p == 0:
                e(f"v_lshlrev_b32 v{a0+i}, 16, v{vP+i}")
            else:
                e(f"v_and_b32 v{a0+i}, 0xffff0000, v{vP+i}")
        for i in range(4):
            e(f"v_mul_f32 v{a0+i}, v{vDT}, v{a0+i}")
        e(f"v_mul_f32 v{a0}, {LOG2E:#x}, v{a0}")
        e(f"v_mul_f32 v{a0+1}, {INV2PI:#x}, v{a0+1}")
        E1, W8, E256, X0 = 38, 40, 42, 44
        for k, (dst, sc) in enumerate(((E1, 1.0), (W8, 8.0), (E256, 256.0))):
            e(f"v_mul_f32 v{60+3*k}, {fbits(sc):#x}, v{a0}")
            e(f"v_mul_f32 v{61+3*k}, {fbits(sc):#x}, v{a0+1}")
        for k in range(3):
            e(f"v_fract_f32 v{61+3*k}, v{61+3*k}")
            e(f"v_exp_f32 v{60+3*k}, v{60+3*k}")
        for k in range(3):
            e(f"v_sin_f32 v{62+3*k}, v{61+3*k}")
            e(f"v_cos_f32 v{61+3*k}, v{61+3*k}")
        cmul(X0, a0 + 4, a0 + 2)
        for k, dst in enumerate((E1, W8, E256)):
            e(f"v_mul_f32 v{dst}, v{60+3*k}, v{61+3*k}")
            e(f"v_mul_f32 v{dst+1}, v{60+3*k}, v{62+3*k}")
        if p == 1:
            e("s_waitcnt lgkmcnt(0)")
        Y = [60, 62, 64, 66]
        W4 = 68
        e(f"v_mov_b32 v{Y[0]}, 1.0")
        e(f"v_mov_b32 v{Y[0]+1}, 0")
        e(f"v_mov_b32 v{Y[1]}, v{W8}")
        e(f"v_mov_b32 v{Y[1]+1}, v{W8+1}")
        cmul(Y[2], W8, W8)
        put(0, X0, True)
        cmul(X0 + 2, X0, E1)
        put(0, Y[0], False)
        cmul(Y[3], Y[2], W8)
        cmul(W4, Y[2], Y[2])
        put(1, Y[1], False)
        put(2, Y[2], False)
        put(3, Y[3], False)
        xs = [(i, X0 + 2 * i, X0 + 2 * (i - 1), E1) for i in range(2, 8)]
        Z = [70, 72, 74, 76]
        xs += [(8, Z[0], X0, E256), (9, Z[1], X0 + 4, E256), (12, Z[2], X0 + 8, E256), (13, Z[3], X0 + 12, E256),
               (10, Z[0], Z[0], E256), (11, Z[2], Z[2], E256), (14, Z[0], Z[0], E256), (15, Z[2], Z[2], E256),
               (16, Z[0], Z[0], E256), (17, Z[0], Z[0], E256), (20, Z[0], Z[0], E256), (21, Z[0], Z[0], E256),
               (18, Z[0], Z[0], E256)]
        put(1, X0 + 2, True)
        ys = [(t, Y[t & 3]) for t in range(4, 32)]
        xi = 0
        for n, (t, y) in enumerate(ys):
            cmul(y, y, W4)
            if xi < len(xs) and (n * len(xs)) // len(ys) >= xi:
                row, d, a, b = xs[xi]
                xi += 1
                cmul(d, a, b)
                put(t, y, False)
                put(row, d, True)
            else:
                put(t, y, False)
        assert xi == len(xs)
        e("s_waitcnt lgkmcnt(0)")
        for k in range(8):
            e(f"ds_read_b128 {vr(vFR+8*k,4)}, v{vKA} offset:{KGX+32*k}")
            e(f"ds_read_b128 {vr(vFR+8*k+4,4)}, v{vKA} offset:{KGY+32*k}")
            if k == 6:
                e("s_waitcnt lgkmcnt(12)")
        for k in range(8):
            e(f"s_waitcnt lgkmcnt({min(14-2*k,12)})")
            mfma(e, vKACC, vFR + 8 * k, vFR + 8 * k + 4, None if (p == 0 and k == 0) else vKACC)
    stamp(e, 2)
    if True:
        e(f"s_cmp_eq_u32 s{sIT}, 0")
        e("s_cbranch_scc0 L_nopf2")
        prefetch(2)
        e.label("L_nopf2")
    e.c("expand K")
    vT, vH = 2, 3
    vEB = 23
    e(f"v_lshlrev_b32 v{vEB}, 4, v{vT}")
    e(f"v_add_u32 v{vEB}, s{sBASE}, v{vEB}")
    e(f"v_lshl_add_u32 v32, v{vH}, 10, v{vEB}")
    e(f"v_lshl_add_u32 v33, v{vH}, 9, v{vEB}")
    e(f"v_add_u32 v33, {EOFF + 2*(512-2+32)}, v33")
    e(f"v_lshl_add_u32 v34, v{vH}, 3, v{vEB}")
    e(f"v_lshl_add_u32 v35, v{l}, 2, s{sBASE}")
    e(f"v_mov_b32 v36, 0")
    e("s_nop 7")
    a = vKACC
    for b in range(2):
        e(f"v_mov_b32_dpp v{40+b}, v{a+8+b} quad_perm:[0,0,2,2] row_mask:0xf bank_mask:0xf")
    for b in range(2):
        e(f"v_cvt_pk_bf16_f32 v{44+4*b}, v{40+b}, v{a+8+b}")
        e(f"v_cvt_pk_bf16_f32 v{45+4*b}, v{a+8+b}, v{a+8+b}")
        e(f"v_mov_b32 v{46+4*b}, v{45+4*b}")
        e(f"v_mov_b32 v{47+4*b}, v{45+4*b}")
        off = EOFF + 2 * (1024 + 256 * b - 4 + 32)
        e(f"ds_write_b64 v32, {vr(44+4*b,2)} offset:{off}")
        e(f"ds_write_b64 v32, {vr(46+4*b,2)} offset:{off+8}")
    e(f"v_cvt_pk_bf16_f32 v52, v{a+10}, v{a+10}")
    e(f"v_cvt_pk_bf16_f32 v54, v{a+6}, v{a+6}")
    e(f"v_cvt_pk_bf16_f32 v55, v{a+6}, v{a+7}")
    e(f"v_cvt_pk_bf16_f32 v56, v{a+7}, v{a+7}")
    e(f"v_mov_b32 v53, v52")
    e(f"v_cmp_gt_u32 vcc, 16, v{l}")
    e("s_mov_b64 s[80:81], exec")
    e("s_mov_b64 exec, 1")
    e(f"ds_write_b64 v{vEB}, v[52:53] offset:{EOFF + 2*(2044+32)}")
    e("s_mov_b64 exec, vcc")
    e(f"ds_write_b32 v35, v36 offset:{EOFF}")
    e("s_mov_b64 exec, s[80:81]")
    e(f"ds_write2_b32 v33, v54, v54 offset0:0 offset1:1")
    e(f"ds_write2_b32 v33, v55, v56 offset0:2 offset1:3")
    e(f"v_cvt_pk_bf16_f32 v57, v{a+4}, v{a+4}")
    e(f"v_cvt_pk_bf16_f32 v58, v{a+5}, v{a+5}")
    e(f"v_cvt_pk_bf16_f32 v60, v{a+0}, v{a+1}")
    e(f"v_cvt_pk_bf16_f32 v61, v{a+2}, v{a+3}")
    e(f"ds_write_b16 v34, v57 offset:{EOFF + 2*(256-1+32)}")
    e(f"ds_write_b32 v34, v57 offset:{EOFF + 2*(256+32)}")
    e(f"ds_write_b16 v34, v58 offset:{EOFF + 2*(256+2+32)}")
    e(f"ds_write_b64 v34, v[60:61] offset:{EOFF + 2*32}")
    e(f"v_add_u32 v37, {EOFF}, v35")
    e("s_waitcnt lgkmcnt(0)")
    for grp in range(0, 17, 4):
        js = [j for j in range(grp, min(grp + 4, 17))]
        if js == [16]:
            e("s_mov_b64 exec, vcc")
        for j in js:
            e(f"ds_read2_b32 {vr(40+2*(j-grp),2)}, v37 offset0:{64*(j-grp)} offset1:{64*(j-grp)+1}")
        for j in js:
            e(f"s_waitcnt lgkmcnt({len(js)-1})")
            e(f"v_alignbit_b32 v{48+j-grp}, v{41+2*(j-grp)}, v{40+2*(j-grp)}, 16")
            e(f"ds_write_b32 v35, v{48+j-grp} offset:{OOFF + 256*j}")
        e(f"v_add_u32 v37, 1024, v37")
    e("s_mov_b64 exec, s[80:81]")
    e.c("conv")
    vAL, vAH, vB1, vBX, vBZ, vB0 = 32, 33, 34, 35, 36, 37
    vC0, vC1 = 64, 80
    vF = 128
    e(f"v_and_b32 v40, 1, v{vT}")
    e(f"v_lshlrev_b32 v41, 1, v{vT}")
    e(f"v_lshlrev_b32 v42, 4, v{vH}")
    e(f"v_sub_u32 v41, v41, v42")
    e(f"v_add_u32 v41, s{sBASE}, v41")
    e(f"v_mov_b32 v43, {OOFF + 48 - 32}")
    e(f"v_mov_b32 v44, {EOFF + 50 - 32}")
    e(f"v_cmp_eq_u32 vcc, 1, v40")
    e(f"v_add_u32 v{vBZ}, s{sBASE}, v42")
    e(f"v_mul_u32_u24 v45, 80, v{vT}")
    e(f"v_cndmask_b32 v43, v43, v44, vcc")
    e(f"v_add_u32 v{vAL}, v41, v43")
    e(f"v_add_u32 v{vAH}, 2048, v{vAL}")
    e(f"v_add_u32 v45, v45, v{vBZ}")
    e(f"v_add_u32 v{vB1}, {(33-4)*80}, v45")
    e(f"v_add_u32 v{vBX}, 80, v45")
    for i in range(16):
        e(f"v_mov_b32 v{vC0+i}, 0")
        e(f"v_mov_b32 v{vC1+i}, 0")

    def conv_reads(mm, st):
        f = vF + 32 * st
        b0 = vB0 + st
        out = [f"v_max_i32 v{b0}, v{vBX}, v{vBZ}", f"v_subrev_u32 v{vBX}, 80, v{vBX}"]
        for s_ in range(2):
            o = 8 * (2 * mm - s_ + 1)
            out.append(f"ds_read2_b32 {vr(f+4*s_,2)}, v{vAL} offset0:{o} offset1:{o+1}")
            out.append(f"ds_read2_b32 {vr(f+4*s_+2,2)}, v{vAL} offset0:{o+2} offset1:{o+3}")
            out.append(f"ds_read_b128 {vr(f+16+4*s_,4)}, v{b0} offset:{32*s_}")
            out.append(f"ds_read_b128 {vr(f+24+4*s_,4)}, v{vB1} offset:{(4-mm)*80+32*s_}")
            out.append(f"ds_read2_b32 {vr(f+8+4*s_,2)}, v{vAH} offset0:{o} offset1:{o+1}")
            out.append(f"ds_read2_b32 {vr(f+8+4*s_+2,2)}, v{vAH} offset0:{o+2} offset1:{o+3}")
        return out

    e("s_waitcnt lgkmcnt(0)")
    for s_ in conv_reads(0, 0):
        e(s_)
    e("s_mov_b32 s78, 0")
    e.label("L_conv")
    for mm in range(4):
        st = mm & 1
        f = vF + 32 * st
        rd = conv_reads(mm + 1, st ^ 1)
        e("s_waitcnt lgkmcnt(0)")
        seq = [(vC0, f, f + 16), (vC1, f, f + 24), (vC1, f + 8, f + 16),
               (vC0, f + 4, f + 20), (vC1, f + 4, f + 28), (vC1, f + 12, f + 20)]
        chunks = [rd[0:5], rd[5:8], rd[8:11], rd[11:14], [], []]
        for (c, a_, b_), ch in zip(seq, chunks):
            mfma(e, c, a_, b_, c)
            for s_ in ch:
                e(s_)
    e(f"v_add_u32 v{vAL}, 256, v{vAL}")
    e(f"v_add_u32 v{vAH}, 256, v{vAH}")
    e(f"v_subrev_u32 v{vB1}, 320, v{vB1}")
    e("s_add_u32 s78, s78, 1")
    e("s_cmp_lt_u32 s78, 8")
    e("s_cbranch_scc1 L_conv")
    stamp(e, 3)
    e("s_waitcnt lgkmcnt(0)")
    e(f"v_mul_u32_u24 v40, 80, v{vT}")
    e(f"v_lshlrev_b32 v41, 3, v{vH}")
    e(f"v_sub_u32 v40, v40, v41")
    e(f"v_add_u32 v40, s{sBASE}, v40")
    for P in range(2):
        for c in range(4):
            e(f"ds_read_b64 {vr(vF+8*P+2*c,2)}, v40 offset:{88 + P*2560 + 16*c}")
    for P in range(2):
        acc = vC1 if P else vC0
        for c in range(4):
            e(f"s_waitcnt lgkmcnt({7-4*P-c})")
            r0, r1 = vF + 8 * P + 2 * c, vF + 8 * P + 2 * c + 1
            e(f"v_and_b32 v42, 0xffff0000, v{r1}")
            e(f"v_lshlrev_b32 v43, 16, v{r1}")
            e(f"v_and_b32 v44, 0xffff0000, v{r0}")
            e(f"v_lshlrev_b32 v45, 16, v{r0}")
            for k in range(4):
                e(f"v_fmac_f32 v{acc+4*c+k}, v{vDS}, v{42+k}")
            e(f"v_cvt_pk_bf16_f32 v{vF+16+8*P+2*c}, v{acc+4*c}, v{acc+4*c+1}")
            e(f"v_cvt_pk_bf16_f32 v{vF+16+8*P+2*c+1}, v{acc+4*c+2}, v{acc+4*c+3}")
    vO = vF + 16
    e(f"s_cmp_eq_u32 s{sIT}, 0")
    e("s_cbranch_scc0 L_out9")
    e.c("params of the 9th channel (used by wave 0 only)")
    e(f"s_add_u32 s{sCH}, s{sIDX}, 512")
    load_params()
    e("s_barrier")
    e(f"v_mul_u32_u24 v40, 33, v{vT}")
    e(f"v_lshl_add_u32 v40, v{vH}, 2, v40")
    e(f"v_lshlrev_b32 v40, 4, v40")
    e(f"s_lshl_b32 s78, s{sWAVE}, 1")
    e(f"v_add_u32 v40, s78, v40")
    for P in range(2):
        for c in range(4):
            for k in range(4):
                op = "ds_write_b16_d16_hi" if k & 1 else "ds_write_b16"
                e(f"{op} v40, v{vO+8*P+2*c+(k>>1)} offset:{P*16896 + (8*c+k)*16}")
    e(f"s_mul_i32 s78, s{sWAVE}, 264")
    e(f"v_add_u32 v41, s78, v{l}")
    e(f"v_add_u32 v41, v41, v{vH}")
    e(f"v_lshlrev_b32 v41, 4, v41")
    e(f"s_lshl_b32 s78, s{sIDX}, 11")
    e(f"s_lshl_b32 s79, s{sWAVE}, 8")
    e(f"s_add_u32 s78, s78, s79")
    e(f"v_add_u32 v42, s78, v{l}")
    e(f"v_lshlrev_b32 v42, 4, v42")
    e("s_waitcnt lgkmcnt(0)")
    e("s_barrier")
    for j in range(4):
        e(f"ds_read_b128 {vr(44+4*j,4)}, v41 offset:{1056*j}")
    for j in range(4):
        e(f"s_waitcnt lgkmcnt({3-j})")
        e(f"buffer_store_dwordx4 {vr(44+4*j,4)}, v42, s[{sA}:{sA+3}], 0 offen offset:{1024*j} {OPT['a_flags']}")
    e("s_barrier")
    stamp(e, 4)
    e(f"s_cmp_eq_u32 s{sWAVE}, 0")
    e("s_cbranch_scc0 L_ssmdone")
    e(f"s_mov_b32 s{sIT}, 1")
    e(f"v_mul_u32_u24 v40, 1152, v{l}")
    e(f"s_lshl_b32 s78, s{sCH}, 1")
    for j in range(32):
        e(f"buffer_load_ushort v{64+j}, v40, s[{sU}:{sU+3}], s78 offen")
        if j < 31:
            e(f"s_add_u32 s78, s78, {64*1152}")
    e(f"v_mul_u32_u24 v41, 80, v{vH}")
    e(f"v_xor_b32 v42, 7, v{vT}")
    e(f"v_lshl_add_u32 v41, v42, 1, v41")
    e(f"v_lshlrev_b32 v42, 2, v{l}")
    e(f"v_mov_b32 v43, 0")
    e(f"v_cmp_gt_u32 vcc, 20, v{l}")
    e("s_and_saveexec_b64 s[80:81], vcc")
    e(f"ds_write_b32 v42, v43")
    e("s_mov_b64 exec, s[80:81]")
    for j in range(32):
        if j % 8 == 0:
            e(f"s_waitcnt vmcnt({24-j}) lgkmcnt(0)")
        e(f"ds_write_b16 v41, v{64+j} offset:{80 + 160*j}")
    e("s_waitcnt lgkmcnt(0)")
    e("s_branch L_chan")
    e.label("L_out9")
    e(f"s_lshr_b32 s78, s{sIDX}, 3")
    e(f"s_add_u32 s78, s78, 64")
    e(f"s_lshl_b32 s78, s78, 15")
    e(f"s_and_b32 s79, s{sIDX}, 7")
    e(f"s_lshl_b32 s79, s79, 1")
    e(f"s_add_u32 s78, s78, s79")
    e(f"v_lshlrev_b32 v40, 9, v{vT}")
    e(f"v_lshl_add_u32 v40, v{vH}, 6, v40")
    for P in range(2):
        for c in range(4):
            for k in range(4):
                op = "buffer_store_short_d16_hi" if k & 1 else "buffer_store_short"
                e(f"{op} v{vO+8*P+2*c+(k>>1)}, v40, s[{sA}:{sA+3}], s78 offen offset:{(8*c+k)*16}")
        if P == 0:
            e("s_add_u32 s78, s78, 16384")
    e.label("L_ssmdone")
    stamp(e, 5)
    stamp_flush(e, 6, sWAVE)
    e("s_endpgm")


def gen_main(e):
    k = "main_kernel"
    e.lines.append(f".globl {k}\n.p2align 8\n.type {k},@function\n{k}:")
    e("s_cmp_ge_u32 s2, 256")
    e("s_cbranch_scc1 L_mainexit")
    stamp(e, 0)
    e("s_load_dwordx2 s[40:41], s[0:1], 0")
    e("s_load_dwordx4 s[44:47], s[0:1], 80")
    e("s_load_dwordx2 s[48:49], s[0:1], 96")
    e("s_load_dwordx2 s[50:51], s[0:1], 128")
    e(f"v_lshrrev_b32 v1, 6, v0")
    e(f"v_and_b32 v{vLANE}, 63, v0")
    e(f"v_readfirstlane_b32 s{sWAVE}, v1")
    e("s_cmp_lt_u32 s2, 64")
    e("s_cbranch_scc1 L_ssm")
    gen_mlp(e)
    gen_ssm(e)
    e.label("L_mainexit")
    e("s_endpgm")


def gen_mix(e):
    k = "mix_kernel"
    e.lines.append(f".globl {k}\n.p2align 8\n.type {k},@function\n{k}:")
    e("s_cmp_ge_u32 s2, 576")
    e("s_cbranch_scc1 L_mixexit")
    e("s_load_dwordx2 s[4:5], s[0:1], 112")
    e("s_load_dwordx2 s[6:7], s[0:1], 128")
    e("v_lshrrev_b32 v1, 6, v0")
    e("v_and_b32 v2, 31, v0")
    e("v_bfe_u32 v3, v0, 5, 1")
    e("s_mul_i32 s20, s2, 7282")
    e("s_lshr_b32 s20, s20, 16")
    e("s_mul_i32 s21, s20, 9")
    e("s_sub_u32 s21, s2, s21")
    e("s_lshl_b32 s22, s2, 12")
    e("v_lshl_add_u32 v4, v0, 4, s22")
    e("s_lshl_b32 s21, s21, 3")
    e("v_lshl_add_u32 v5, v1, 1, v3")
    e("v_add_u32 v5, s21, v5")
    e("s_lshl_b32 s20, s20, 5")
    e("v_add_u32 v2, s20, v2")
    e("v_lshl_add_u32 v6, v5, 11, v2")
    e("v_lshlrev_b32 v6, 4, v6")
    e("v_lshlrev_b32 v7, 2, v2")
    e("v_mul_u32_u24 v8, 1152, v2")
    e("v_lshl_add_u32 v8, v5, 4, v8")
    e("s_waitcnt lgkmcnt(0)")
    srd(e, 8, 6, WS_G + 8192)
    srd(e, 12, 4, L * D * 2)
    for s in range(S):
        e(f"s_mov_b32 s{24+s}, {WS_P + s*SLAB}")
    e(f"s_mov_b32 s30, {WS_A}")
    e(f"s_mov_b32 s31, {WS_G}")
    e("buffer_load_dword v9, v7, s[8:11], s31 offen")
    for s in range(S):
        e(f"buffer_load_dwordx4 {vr(12+4*s,4)}, v4, s[8:11], s{24+s} offen")
    e(f"buffer_load_dwordx4 {vr(12+4*S,4)}, v6, s[8:11], s30 offen")
    acc = 44
    e("s_mov_b32 s16, 0x3f80")
    e("s_mov_b32 s17, 0x3f800000")
    for s in range(S):
        e(f"s_waitcnt vmcnt({S-s})")
        for i in range(4):
            r = 12 + 4 * s + i
            if s == 0:
                e(f"v_lshlrev_b32 v{acc+2*i}, 16, v{r}")
                e(f"v_and_b32 v{acc+2*i+1}, 0xffff0000, v{r}")
            else:
                e(f"v_dot2_f32_bf16 v{acc+2*i}, v{r}, s16, v{acc+2*i}")
                e(f"v_dot2_f32_bf16 v{acc+2*i+1}, v{r}, s17, v{acc+2*i+1}")
    e("v_sub_f32 v10, 1.0, v9")
    e("s_waitcnt vmcnt(0)")
    for i in range(4):
        r = 12 + 4 * S + i
        e(f"v_lshlrev_b32 v{12+2*i}, 16, v{r}")
        e(f"v_and_b32 v{13+2*i}, 0xffff0000, v{r}")
    for i in range(8):
        e(f"v_mul_f32 v{12+i}, v9, v{12+i}")
    for i in range(8):
        e(f"v_fmac_f32 v{12+i}, v10, v{acc+i}")
    for i in range(4):
        e(f"v_cvt_pk_bf16_f32 v{20+i}, v{12+2*i}, v{13+2*i}")
    e("buffer_store_dwordx4 v[20:23], v8, s[12:15], 0 offen")
    e.label("L_mixexit")
    e("s_endpgm")


def kd(name, vgpr, sgpr):
    return f""".amdhsa_kernel {name}
  .amdhsa_next_free_vgpr {vgpr}
  .amdhsa_next_free_sgpr {sgpr}
  .amdhsa_accum_offset {(vgpr+3)//4*4}
  .amdhsa_group_segment_fixed_size 0
  .amdhsa_kernarg_size 136
  .amdhsa_user_sgpr_count 2
  .amdhsa_user_sgpr_kernarg_segment_ptr 1
  .amdhsa_system_sgpr_workgroup_id_x 1
.end_amdhsa_kernel
"""


def generate(**opt):
    OPT.update(opt)
    e = E()
    head = f"""; gated mix of an S4 convolution branch and a dense-mish-dense branch (generated by my own script)
; @launch kernel=main_kernel grid=(256,1,1) block=(512,1,1) lds=163840
; @launch kernel=mix_kernel grid=(576,1,1) block=(256,1,1) lds=0
.amdgcn_target "amdgcn-amd-amdhsa--gfx950"
.text
"""
    gen_main(e)
    gen_mix(e)
    tail = '.section .rodata,"a"\n.p2align 6\n' + kd("main_kernel", 256, 102) + ".p2align 6\n" + kd("mix_kernel", 56, 40)
    return head + e.text() + tail


if __name__ == "__main__":
    out = sys.argv[1] if len(sys.argv) > 1 else "k.s"
    opt = {}
    for a in sys.argv[2:]:
        k_, v_ = a.split("=", 1)
        opt[k_] = {"True": True, "False": False}.get(v_, v_)
    open(out, "w").write(generate(**opt))
```
